```python
import torch

def _softmax(x, axis=-1):
    return torch.softmax(x, dim=axis)
def _gelu(x):
    return torch.nn.functional.gelu(x, approximate="tanh")
def _silu(x):
    return torch.nn.functional.silu(x)
def _sigmoid(x):
    return torch.sigmoid(x)
def _layernorm(x, axis=-1, eps=1e-5):
    m = x.mean(dim=axis, keepdim=True)
    v = x.var(dim=axis, keepdim=True, unbiased=False)
    return (x - m) / torch.sqrt(v + eps)
def _scatter_add(tgt, idx, src, axis=0):
    return tgt.clone().index_add_(axis, idx, src)
def _segment_sum(src, seg, n):
    out = torch.zeros((n,) + src.shape[1:], dtype=src.dtype)
    return out.index_add_(0, seg, src)
def _pad(x, pw):
    flat = tuple(v for pair in reversed(pw) for v in pair)
    return torch.nn.functional.pad(x, flat)

kernel_name = 'parallel_sum__ssm_conv_s5__dense_activation_squared_relu__prompt'

def setup_inputs():

    _w = (lambda a: (lambda t: t.to(torch.bfloat16) if t.is_floating_point() else t)(torch.as_tensor(a)))
    def _A_setup():
        B, S, D = 1, 2048, 640
        P = D
        Lambda_re = -0.5 * (lambda _x: torch.exp(torch.as_tensor(_x)))((lambda *s: torch.randn(*s, dtype=torch.bfloat16) * 0.8)(P))
        Lambda_im = (lambda *s: torch.randn(*s, dtype=torch.bfloat16) * 0.8)(P) * 1.0
        B_re = (lambda *s: torch.randn(*s, dtype=torch.bfloat16) * 1.6)(P, D) * (D ** -0.5)
        B_im = (lambda *s: torch.randn(*s, dtype=torch.bfloat16) * 1.6)(P, D) * (D ** -0.5)
        C_re = (lambda *s: torch.randn(*s, dtype=torch.bfloat16) * 1.6)(D, P) * (P ** -0.5)
        C_im = (lambda *s: torch.randn(*s, dtype=torch.bfloat16) * 1.6)(D, P) * (P ** -0.5)
        log_dt = (lambda *s: torch.randn(*s, dtype=torch.bfloat16) * 0.8)(P) * 0.3 - 2.0
        Dskip = (lambda *s: torch.randn(*s, dtype=torch.bfloat16) * 0.8)(D)
        return {
            "x": _w((lambda *s: torch.randn(*s, dtype=torch.bfloat16) * 0.05)(B, S, D)),
            "Lambda_re": _w(Lambda_re),
            "Lambda_im": _w(Lambda_im),
            "B_re": _w(B_re),
            "B_im": _w(B_im),
            "C_re": _w(C_re),
            "C_im": _w(C_im),
            "log_dt": _w(log_dt),
            "Dskip": _w(Dskip),
        }
    _A_in = _A_setup()

    def _B_setup():
        B, S, D, F = 1, 2048, 640, 1728
        return {
            "x": _w((lambda *s: torch.randn(*s, dtype=torch.bfloat16) * 0.05)(B, S, D)),
            "w1": _w((lambda *s: torch.randn(*s, dtype=torch.bfloat16) * 0.05)(D, F)),
            "b1": _w((lambda *s: torch.randn(*s, dtype=torch.bfloat16) * 0.4)(F)),
            "w2": _w((lambda *s: torch.randn(*s, dtype=torch.bfloat16) * 0.05)(F, D)),
            "b2": _w((lambda *s: torch.randn(*s, dtype=torch.bfloat16) * 1.6)(D)),
        }
    _B_in = _B_setup()

    return {
        "A_x": _A_in["x"],
        "A_Lambda_re": _A_in["Lambda_re"],
        "A_Lambda_im": _A_in["Lambda_im"],
        "A_B_re": _A_in["B_re"],
        "A_B_im": _A_in["B_im"],
        "A_C_re": _A_in["C_re"],
        "A_C_im": _A_in["C_im"],
        "A_log_dt": _A_in["log_dt"],
        "A_Dskip": _A_in["Dskip"],
        "B_x": _B_in["x"],
        "B_w1": _B_in["w1"],
        "B_b1": _B_in["b1"],
        "B_w2": _B_in["w2"],
        "B_b2": _B_in["b2"],
    }

def reference(A_x, A_Lambda_re, A_Lambda_im, A_B_re, A_B_im, A_C_re, A_C_im, A_log_dt, A_Dskip, B_x, B_w1, B_b1, B_w2, B_b2):
    def _A_ref(x, Lambda_re, Lambda_im, B_re, B_im, C_re, C_im, log_dt, Dskip):
        Bsz, L, H = x.shape
        Lam = Lambda_re + 1j * Lambda_im
        Bmat = B_re + 1j * B_im
        Cmat = C_re + 1j * C_im
        dt = torch.exp(log_dt)
        Lam_bar = torch.exp(dt * Lam)
        B_bar = ((Lam_bar - 1.0) / Lam)[:, None] * Bmat
        Bu = torch.einsum("bld,pd->blp", x + 0j, B_bar)
        h = torch.zeros_like(Bu[:, 0, :])
        hs = []
        for t in range(L):
            h = Lam_bar[None, :] * h + Bu[:, t, :]
            hs.append(h)
        hseq = torch.stack(hs, 1)
        y = 2.0 * torch.einsum("blp,dp->bld", hseq, Cmat).real + x * Dskip[None, None, :]
        return y

    def _B_ref(x, w1, b1, w2, b2):
        h = torch.einsum("bsd,df->bsf", x, w1) + b1
        zero = torch.zeros_like(h)
        r = torch.where(h > zero, h, zero)
        h = r * r
        out = torch.einsum("bsf,fd->bsd", h, w2) + b2
        return out

    x = A_x
    xn = _layernorm(x, axis=-1)
    return x + _A_ref(xn, A_Lambda_re, A_Lambda_im, A_B_re, A_B_im, A_C_re, A_C_im, A_log_dt, A_Dskip) + _B_ref(xn, B_w1, B_b1, B_w2, B_b2)
```

```python
import re

TRANS = ("v_exp_f32", "v_log_f32", "v_rcp_f32", "v_rsq_f32", "v_sqrt_f32", "v_sin_f32", "v_cos_f32")
_reg = re.compile(r"(?<![\w.])(-?)(?:abs\()?([vas])(?:\[(\d+):(\d+)\]|(\d+))(?![\w])")


def regs_of(op):
    out = set()
    op = op.strip()
    if op in ("vcc", "vcc_lo", "vcc_hi"):
        return {("s", "vcc")}
    if op == "m0":
        return {("s", "m0")}
    if op in ("exec",):
        return {("s", "exec")}
    for m in _reg.finditer(op):
        k = m.group(2)
        if m.group(3) is not None:
            out |= {(k, i) for i in range(int(m.group(3)), int(m.group(4)) + 1)}
        else:
            out.add((k, int(m.group(5))))
    return out


class Ins:
    def __init__(self, text):
        self.text = text
        t = text.split(";")[0].strip()
        self.label = t.endswith(":")
        self.directive = t.startswith(".")
        self.empty = not t
        self.op = ""
        self.w = set()
        self.r = set()
        self.srcc = set()
        self.ab = set()
        self.data = set()
        if self.label or self.directive or self.empty:
            return
        parts = t.split(None, 1)
        self.op = op = parts[0]
        rest = parts[1] if len(parts) > 1 else ""
        ops, depth, cur = [], 0, ""
        for ch in rest:
            if ch in "[(":
                depth += 1
            if ch in "])":
                depth -= 1
            if ch == "," and depth == 0:
                ops.append(cur)
                cur = ""
            else:
                cur += ch
        if cur.strip():
            ops.append(cur)
        mods = ""
        if ops:
            last = ops[-1].strip().split(None, 1)
            ops[-1] = last[0]
            mods = last[1] if len(last) > 1 else ""
        self.mods = mods
        self.ops = ops
        R = [regs_of(o) for o in ops]
        self.mfma = op.startswith("v_mfma")
        self.valu = op.startswith("v_") and not self.mfma
        self.salu = op.startswith("s_")
        self.vmem = op.startswith(("buffer_", "global_"))
        self.ds = op.startswith("ds_")
        self.dpp = "_dpp" in op
        self.trans = op.startswith(TRANS)
        self.lds_dma = self.vmem and re.search(r"\blds\b", mods) is not None
        un = lambda xs: set().union(*xs) if xs else set()
        if self.mfma:
            self.w = R[0]
            self.ab = R[1] | R[2]
            self.srcc = R[3]
            self.r = self.ab | self.srcc
        elif self.valu:
            if op.startswith(("v_permlane16_swap", "v_permlane32_swap", "v_swap")):
                self.w = R[0] | R[1]
                self.r = R[0] | R[1]
            elif op.startswith(("v_add_co", "v_sub_co", "v_addc_co")):
                self.w = R[0] | R[1]
                self.r = un(R[2:])
            else:
                self.w = R[0]
                self.r = un(R[1:])
                if op.startswith(("v_fmac", "v_dot2c")) or (self.dpp and "bound_ctrl" not in mods):
                    self.r |= R[0]
                if op.startswith("v_cmpx"):
                    self.w |= {("s", "exec")}
        elif self.vmem:
            if "load" in op and not self.lds_dma:
                self.w = R[0]
                self.r = un(R[1:])
            elif self.lds_dma:
                self.r = un(R) | {("s", "m0")}
            else:
                self.r = un(R)
                if op.startswith("buffer_"):
                    self.data = R[0] if R else set()
                else:
                    self.data = R[1] if len(R) > 1 else set()
        elif self.ds:
            if "read" in op or "bpermute" in op:
                self.w = R[0]
                self.r = un(R[1:])
            else:
                self.r = un(R)
        elif self.salu:
            if op.startswith(("s_cmp", "s_waitcnt", "s_barrier", "s_nop", "s_cbranch", "s_branch", "s_endpgm", "s_sleep", "s_setprio")):
                self.r = un(R)
                if "vcc" in op:
                    self.r |= {("s", "vcc")}
            else:
                self.w = R[0] if R else set()
                self.r = un(R[1:])
                if "saveexec" in op:
                    self.w |= {("s", "exec")}

    def states(self):
        if self.label or self.directive or self.empty:
            return 0
        if self.op == "s_nop":
            return int(self.ops[0]) + 1
        return 1


def need(p, c):
    n = 0
    vg = lambda s: {x for x in s if x[0] in "va"}
    sg = lambda s: {x for x in s if x[0] == "s"}
    if p.mfma:
        passes = 8 if "32x32" in p.op else 4
        if c.mfma:
            if p.w & c.ab:
                n = max(n, passes + 4)
            if p.w & c.srcc and p.w != c.srcc:
                n = max(n, passes + 2)
            if p.w & c.w and not (p.w & c.srcc):
                n = max(n, passes + 2)
        elif c.valu or c.vmem or c.ds:
            if p.w & (c.r | c.w):
                n = max(n, passes + 4)
            if c.valu and p.srcc & c.w:
                n = max(n, passes - 1)
    if p.valu:
        if c.mfma and vg(p.w) & c.r:
            n = max(n, 2)
        if c.mfma and ("s", "exec") in p.w:
            n = max(n, 4)
        if c.valu and c.dpp and vg(p.w) & c.r:
            n = max(n, 2)
        if c.valu and c.op.startswith("v_permlane") and vg(p.w) & c.r:
            n = max(n, 2)
        if c.valu and c.op.startswith(("v_readfirstlane", "v_readlane")) and vg(p.w) & c.r:
            n = max(n, 1)
        if p.trans and c.valu and p.w & c.r:
            n = max(n, 1)
        if c.vmem and sg(p.w) & c.r:
            n = max(n, 5)
        if c.valu and sg(p.w) & c.r:
            n = max(n, 2)
        if c.salu and sg(p.w) & c.r:
            n = max(n, 2)
        if "sdwa" in p.op and c.valu and p.w & (c.r | c.w):
            n = max(n, 1)
    if p.salu:
        if ("s", "m0") in p.w and c.lds_dma:
            n = max(n, 1)
        if ("s", "exec") in p.w and c.valu and c.dpp:
            n = max(n, 2)
    if p.vmem and p.data and re.search(r"x[34]\b", p.op) and (c.valu or c.mfma or c.ds or c.vmem) and p.data & c.w:
        n = max(n, 2)
    return n


def insert_nops(lines):
    out = []
    hist = []
    added = 0
    for text in lines:
        ins = Ins(text)
        if ins.label or ins.directive or ins.empty:
            out.append(text)
            continue
        dist = 0
        pad = 0
        for p in reversed(hist):
            k = need(p, ins)
            if k > dist:
                pad = max(pad, k - dist)
            dist += p.states()
            if dist >= 20:
                break
        if pad:
            nop = Ins(f"s_nop {pad-1}")
            out.append(nop.text)
            hist.append(nop)
            added += 1
        out.append(text)
        hist.append(ins)
        if len(hist) > 32:
            hist.pop(0)
    return out, added


class Asm:
    def __init__(self):
        self.L = []
        self.vm = []

    def __call__(self, s):
        for line in s.split("\n"):
            line = line.strip()
            if line:
                self.L.append(line)

    def item(self, it):
        if isinstance(it, str):
            self(it)
        elif isinstance(it, list):
            for x in it:
                self.item(x)
        elif callable(it):
            it()
        elif it[0] == "vm":
            self.vmem(it[1], it[2], it[3] if len(it) > 3 else False)
        elif it[0] == "wait":
            self.wait_vm(*it[1:])
        else:
            raise ValueError(it)

    def vmem(self, text, tag, optional=False):
        self(text)
        self.vm.append((tag, optional))

    def vm_count(self, tags):
        if isinstance(tags, str):
            tags = [tags]
        last = -1
        for i, (t, _) in enumerate(self.vm):
            if t in tags:
                last = i
        if last < 0:
            return None
        n = sum(1 for t, o in self.vm[last + 1:] if not o)
        return last, n

    def wait_vm(self, tags, lgkm=None):
        r = self.vm_count(tags)
        parts = []
        if r is not None:
            last, n = r
            n = min(n, 63)
            parts.append(f"vmcnt({n})")
            self.vm = self.vm[last + 1:]
        if lgkm is not None:
            parts.append(f"lgkmcnt({lgkm})")
        if parts:
            self("s_waitcnt " + " ".join(parts))

    def wait_all(self):
        self("s_waitcnt vmcnt(0)")
        self.vm = []

    def weave(self, main, streams):
        n = len(main)
        pre = [[] for _ in main]
        post = [[] for _ in main]
        for items, a, b in streams:
            k = len(items)
            for j, it in enumerate(items):
                pos = min(n - 1, int((a + (b - a) * j / max(k, 1)) * n))
                if isinstance(it, tuple) and it[0] == "pre":
                    if any(isinstance(x, tuple) and x[0] == "vm" and "lds" in x[1].split()[-1:] for x in post[pos]):
                        post[pos].append(it[1])
                    else:
                        pre[pos].append(it[1])
                    post[pos].append(it[2])
                else:
                    post[pos].append(it)
        for m, a, b in zip(main, pre, post):
            for x in a:
                self.item(x)
            self.item(m)
            for x in b:
                self.item(x)

    def text(self):
        lines, added = insert_nops(self.L)
        return "\n".join(("" if (l.endswith(":") or l.startswith((".", ";"))) else "    ") + l for l in lines) + "\n", added
```

```python
import sys, struct
from asmlib import Asm

NAME = "parallel_sum__ssm_conv_s5__dense_activation_squared_relu__prompt"

HT = 376 * 256
WS_H = 0
WS_W2 = 0xC00000
WS_ST = 0xE40000
WS_AG = 0xE50000
WS_FL = 0xE80000
WS_END = 0xE90000
WS_DBG = 0xF00000
OOB = 0x8000000
SPIN = 400000


def f2u(x):
    return "0x%08x" % struct.unpack("<I", struct.pack("<f", x))[0]


P_X, P_LRE, P_LIM, P_BRE, P_BIM, P_CRE, P_CIM, P_LDT, P_DSK, P_BX, P_W1, P_B1, P_W2, P_B2, P_OUT, P_DBG, P_WS = [4 + 2 * i for i in range(17)]
SRD_X, SRD_A, SRD_B, SRD_WS, SRD_C, SRD_O = 40, 44, 48, 52, 56, 60
sW, sRB, sCGI, sIDX, sK, sXO, sWO0, sWO1, sWO2, sQ, sR2, sCB = range(64, 76)
sCT = [76, 77, 78, 79, 80]
sHT = [81, 82, 83, 84]
sW2 = 85
sT0, sT1, sT2, sT3, sROLE = 3, 22, 23, 38, 39
STAMP0 = 86


def srd(n):
    return f"s[{n}:{n+3}]"


def vr(n, c=1):
    return f"v{n}" if c == 1 else f"v[{n}:{n+c-1}]"


def ar(n, c=1):
    return f"a{n}" if c == 1 else f"a[{n}:{n+c-1}]"


vN, vQ4 = 1, 2
vXV = [3, 4]
vWV = [5, 6]
vXA = [[7, 8], [9, 10]]
vWA = 11
vCV = [17, 18]
vCA = [19, 20]
vL16, vL16B = 21, 22
vHS = [23, 24, 25]
vAG = 26
vAL = 27
vPL = 28
vT = 32
KC = 48
vST = 132
vCS = 148
ACC = 160
LAM, P8, KAP, AB = KC, KC + 12, KC + 60, KC + 72
B1 = KC
aXB = [160, 192]
aWB = [224, 236]
aONE = 248
aW2 = [200, 220]
ACC2 = 48
HR = 128
BASE = 192
BIN = 212
BT = 244
vHV, vHVX, vTR, vOUT, vRW, vRR = 3, 4, 5, 6, 7, 8


def acc(i, T):
    return ACC + (i * 3 + T) * 4


class Gen:
    def __init__(self, diag=False, rot=(1, 1), map2="4x2", opts=None):
        self.A = Asm()
        self.diag = diag
        self.rot = rot
        self.map2 = map2
        self.o = opts or {}

    def stamp(self, k):
        if self.diag:
            self.A(f"s_memrealtime s[{STAMP0+2*k}:{STAMP0+2*k+1}]")

    def prologue(self):
        A = self.A
        A("s_cmp_ge_u32 s2, 256\ns_cbranch_scc1 L_end")
        self.stamp(0)
        A("s_load_dwordx16 s[4:19], s[0:1], 0\ns_load_dwordx16 s[20:35], s[0:1], 64\ns_load_dwordx2 s[36:37], s[0:1], 128")
        A(f"s_getpc_b64 s[{SRD_O}:{SRD_O+1}]\nL_pc:")
        A(f"s_lshr_b32 s{sT0}, s2, 3\ns_mul_i32 s{sT3}, s{sT0}, CODE_LINES")
        A(f"v_add_u32 v{vT}, s{sT3}, v0\nv_lshlrev_b32 v{vT}, 7, v{vT}")
        A(f"v_cmp_gt_u32 vcc, CODE_LINES, v0\ns_and_saveexec_b64 s[{SRD_O+2}:{SRD_O+3}], vcc\ns_cbranch_execz L_nopf")
        A.vmem(f"global_load_dword v{vPL}, v{vT}, s[{SRD_O}:{SRD_O+1}]", "pf", True)
        A(f"L_nopf:\ns_mov_b64 exec, -1")
        A(f"v_lshrrev_b32 v{vT}, 6, v0\nv_and_b32 v0, 63, v0")
        A(f"v_readfirstlane_b32 s{sW}, v{vT}")
        A(f"s_and_b32 s{sT3}, s2, 4\ns_lshl_b32 s{sT3}, s{sT3}, 1\ns_lshr_b32 s{sRB}, s{sT0}, 2\ns_add_u32 s{sRB}, s{sRB}, s{sT3}")
        A(f"s_and_b32 s{sT3}, s2, 3\ns_and_b32 s{sK}, s{sT0}, 3")
        A(f"s_lshl_b32 s{sCGI}, s{sT3}, 2\ns_add_u32 s{sCGI}, s{sCGI}, s{sK}")
        A(f"s_lshl_b32 s{sIDX}, s{sT3}, 1\ns_add_u32 s{sIDX}, s{sIDX}, s{sK}")
        A(f"s_cmp_lt_u32 s{sK}, 2\ns_cselect_b32 s{sROLE}, 0, 1")
        A(f"s_cmp_eq_u32 s{sCGI}, 14\ns_cselect_b32 s{sROLE}, 0, s{sROLE}")
        if self.map2 == "4x2":
            A(f"s_and_b32 s{sT3}, s2, 6\ns_lshl_b32 s{sT3}, s{sT3}, 2\ns_lshr_b32 s{sR2}, s{sT0}, 2\ns_add_u32 s{sR2}, s{sR2}, s{sT3}")
            A(f"s_and_b32 s{sT3}, s2, 1\ns_lshl_b32 s{sT3}, s{sT3}, 2\ns_add_u32 s{sCB}, s{sT3}, s{sK}")
        else:
            A(f"s_and_b32 s{sT3}, s2, 7\ns_lshl_b32 s{sT3}, s{sT3}, 2\ns_lshr_b32 s{sR2}, s{sT0}, 3\ns_add_u32 s{sR2}, s{sR2}, s{sT3}")
            A(f"s_and_b32 s{sCB}, s{sT0}, 7")
        a, b = self.rot
        A(f"s_mul_i32 s{sK}, s{sRB}, {a}\ns_mul_i32 s{sT3}, s{sCGI}, {b}\ns_add_u32 s{sK}, s{sK}, s{sT3}")
        A(f"s_mul_i32 s{sT3}, s{sK}, 6554\ns_lshr_b32 s{sT3}, s{sT3}, 16\ns_mul_i32 s{sT3}, s{sT3}, 10\ns_sub_u32 s{sK}, s{sK}, s{sT3}")
        A(f"s_mul_i32 s{sQ}, s{sW}, 40960")
        j8, c8, t0, t1 = vT, vT + 1, vT + 2, vT + 3
        A(f"v_lshrrev_b32 v{j8}, 3, v0\nv_and_b32 v{c8}, 7, v0\nv_and_b32 v{vN}, 15, v0\nv_lshrrev_b32 v{vQ4}, 4, v0")
        A(f"s_lshl_b32 s{sT3}, s{sRB}, 7\ns_lshl_b32 s{sXO}, s{sW}, 1\ns_add_u32 s{sT3}, s{sT3}, s{sXO}\ns_mul_i32 s{sT3}, s{sT3}, 1280")
        A(f"v_lshrrev_b32 v{t0}, 1, v{j8}\nv_xor_b32 v{t0}, v{t0}, v{c8}\nv_lshlrev_b32 v{t0}, 4, v{t0}")
        A(f"v_mul_u32_u24 v{t1}, 10240, v{j8}\nv_add3_u32 v{vXV[0]}, v{t1}, v{t0}, s{sT3}")
        A(f"v_xor_b32 v{vXV[1]}, 64, v{vXV[0]}\nv_add_u32 v{vXV[1]}, 81920, v{vXV[1]}")
        A(f"s_lshl_b32 s{sT0}, s{sRB}, 4\ns_add_u32 s{sT0}, s{sT0}, s{sCGI}\ns_lshl_b32 s{sT0}, s{sT0}, 3\ns_add_u32 s{sT0}, s{sT0}, s{sXO}")
        A(f"v_lshrrev_b32 v{vT+4}, 5, v0\nv_add_u32 v{vT+4}, s{sT0}, v{vT+4}")
        A(f"v_and_b32 v{vT+5}, 31, v0\nv_mul_u32_u24 v{vT+6}, 1280, v{vT+4}")
        A(f"v_lshl_add_u32 v{vT+7}, v{vT+5}, 3, v{vT+6}\nv_lshl_add_u32 v{vT+6}, v{vT+5}, 4, v{vT+6}")
        A(f"s_lshl_b32 s{sXO}, s{sK}, 7")
        A(f"s_mov_b32 s{SRD_X+2}, 2621440\ns_mov_b32 s{SRD_X+3}, 0x20000\ns_mov_b32 s{SRD_A+3}, 0x20000\ns_mov_b32 s{SRD_B+3}, 0x20000")
        A(f"s_mov_b32 s{SRD_WS+2}, {WS_END if not self.diag else WS_DBG + 0x10000}\ns_mov_b32 s{SRD_WS+3}, 0x20000")
        A("s_waitcnt lgkmcnt(0)")
        A(f"s_mov_b32 s{SRD_X}, s{P_X}\ns_mov_b32 s{SRD_X+1}, s{P_X+1}\ns_mov_b32 s{SRD_WS}, s{P_WS}\ns_mov_b32 s{SRD_WS+1}, s{P_WS+1}")
        S = ACC
        A.vmem(f"buffer_load_dwordx4 {vr(S,4)}, v{vT+6}, {srd(SRD_X)}, 0 offen", "sx")
        A.vmem(f"buffer_load_dwordx4 {vr(S+4,4)}, v{vT+6}, {srd(SRD_X)}, 0 offen offset:512", "sx")
        A.vmem(f"buffer_load_dwordx2 {vr(S+8,2)}, v{vT+7}, {srd(SRD_X)}, 0 offen offset:1024", "sx")
        A(f"s_cmp_eq_u32 s{sROLE}, 0\ns_cbranch_scc0 L_ssm")

    def late_setup(self):
        A = self.A
        j8, c8, t0, t1 = vT, vT + 1, vT + 2, vT + 3
        A(f"v_lshrrev_b32 v{t0}, 1, v{vN}\nv_xor_b32 v{t0}, v{t0}, v{vQ4}\nv_lshlrev_b32 v{t0}, 4, v{t0}")
        A(f"v_lshl_add_u32 v{vXA[0][0]}, v{vN}, 7, v{t0}\nv_xor_b32 v{vXA[1][0]}, 64, v{vXA[0][0]}")
        A(f"v_add_u32 v{vXA[0][1]}, 81920, v{vXA[0][0]}\nv_add_u32 v{vXA[1][1]}, 81920, v{vXA[1][0]}")
        A(f"v_add_u32 v{vCA[0]}, s{sQ}, v{vXA[0][0]}\nv_add_u32 v{vCA[1]}, s{sQ}, v{vXA[1][0]}")
        A(f"v_lshlrev_b32 v{vL16}, 4, v0\nv_add_u32 v{vL16B}, 4096, v{vL16}")
        A(f"s_mul_i32 s{sT0}, s{sCB}, {80*1280}\ns_and_b32 s{sT3}, s{sW}, 1\ns_mul_i32 s{sT3}, s{sT3}, 640\ns_add_u32 s{sT0}, s{sT0}, s{sT3}")
        A(f"v_lshrrev_b32 v{t0}, 1, v{j8}\nv_xor_b32 v{t0}, v{t0}, v{c8}\nv_lshlrev_b32 v{t0}, 4, v{t0}")
        A(f"v_mul_u32_u24 v{t1}, 1280, v{j8}\nv_add_u32 v{t1}, s{sT0}, v{t1}")
        A(f"v_add_u32 v{vCV[0]}, v{t1}, v{t0}\nv_xor_b32 v{t0}, 64, v{t0}\nv_add_u32 v{t1}, 10240, v{t1}\nv_add_u32 v{vCV[1]}, v{t1}, v{t0}")
        A(f"s_cmp_lt_u32 s{sW}, 2\ns_cselect_b32 s{SRD_C}, s{P_CRE}, s{P_CIM}\ns_cselect_b32 s{SRD_C+1}, s{P_CRE+1}, s{P_CIM+1}")
        A(f"s_mov_b32 s{SRD_C+2}, 819200\ns_mov_b32 s{SRD_C+3}, 0x20000")
        for t in range(5):
            A(f"s_mov_b32 s{sCT[t]}, {t*20480}")
        A(f"s_mov_b32 s{SRD_O}, s{P_OUT}\ns_mov_b32 s{SRD_O+1}, s{P_OUT+1}\ns_mov_b32 s{SRD_O+2}, 5242880\ns_mov_b32 s{SRD_O+3}, 0x20000")
        A(f"s_mul_i32 s{sW2}, s{sCB}, 54\ns_add_u32 s{sW2}, s{sW2}, s{sW}\ns_mul_i32 s{sW2}, s{sW2}, 5120\ns_add_u32 s{sW2}, s{sW2}, {WS_W2}")
        for j in range(4):
            A(f"s_add_u32 s{sT0}, s{sW}, {j}\ns_and_b32 s{sT0}, s{sT0}, 3\ns_lshl_b32 s{sT3}, s{sR2}, 2\ns_add_u32 s{sT0}, s{sT0}, s{sT3}\ns_mul_i32 s{sHT[j]}, s{sT0}, {HT}")
        A(f"v_mov_b32 v{t0}, 0x3f803f80")
        for i in range(4):
            A(f"v_accvgpr_write_b32 a{aONE+i}, v{t0}")

    def stats_compute(self):
        A = self.A
        S, U = ACC, ACC + 12
        R = ACC + 40
        A.wait_vm("sx")
        for k in range(10):
            A(f"v_lshlrev_b32 v{U+2*k}, 16, v{S+k}\nv_and_b32 v{U+2*k+1}, 0xffff0000, v{S+k}")

        def reduce(src):
            for k in range(5):
                A(f"v_pk_add_f32 {vr(R+2*k,2)}, {vr(src+4*k,2)}, {vr(src+4*k+2,2)}")
            A(f"v_pk_add_f32 {vr(R,2)}, {vr(R,2)}, {vr(R+2,2)}\nv_pk_add_f32 {vr(R+4,2)}, {vr(R+4,2)}, {vr(R+6,2)}")
            A(f"v_pk_add_f32 {vr(R,2)}, {vr(R,2)}, {vr(R+8,2)}\nv_pk_add_f32 {vr(R,2)}, {vr(R,2)}, {vr(R+4,2)}")
            A(f"v_add_f32 v{R}, v{R}, v{R+1}")
            for d in (8, 4, 2, 1):
                A(f"v_add_f32_dpp v{R}, v{R}, v{R} row_ror:{d} row_mask:0xf bank_mask:0xf")
            A(f"v_mov_b32 v{R+1}, v{R}\nv_permlane16_swap_b32 v{R}, v{R+1}\nv_add_f32 v{R}, v{R}, v{R+1}")
            A(f"v_mul_f32 v{R}, {f2u(1.0/640)}, v{R}")
        reduce(U)
        M = R + 12
        A(f"v_cvt_pk_bf16_f32 v{M}, v{R}, v{R}\nv_lshlrev_b32 v{M}, 16, v{M}")
        for k in range(10):
            A(f"v_pk_add_f32 {vr(U+2*k,2)}, {vr(U+2*k,2)}, {vr(R,2)} op_sel_hi:[1,0] neg_lo:[0,1] neg_hi:[0,1]")
        for k in range(10):
            A(f"v_pk_mul_f32 {vr(U+2*k,2)}, {vr(U+2*k,2)}, {vr(U+2*k,2)}")
        reduce(U)
        rnd = f"v_cvt_pk_bf16_f32 v{R}, v{R}, v{R}\nv_lshlrev_b32 v{R}, 16, v{R}"
        A(rnd)
        A(f"v_add_f32 v{R}, {f2u(1e-5)}, v{R}")
        A(rnd)
        A(f"v_sqrt_f32 v{R}, v{R}")
        A(rnd)
        A(f"v_rcp_f32 v{M+1}, v{R}")
        A(f"v_lshlrev_b32 v{vT+4}, 3, v{vT+4}\nv_add_u32 v{vT+4}, {WS_ST}, v{vT+4}\nv_cmp_eq_u32 vcc, 0, v{vT+5}\nv_mov_b32 v{vT+6}, {OOB}")
        A(f"v_cndmask_b32 v{vT+4}, v{vT+6}, v{vT+4}, vcc")
        A.vmem(f"buffer_store_dwordx2 {vr(M,2)}, v{vT+4}, {srd(SRD_WS)}, 0 offen sc1", "pre")

    def kadv(self, role):
        out = [f"s_add_u32 s{sK}, s{sK}, 1\ns_cmp_ge_u32 s{sK}, 10\ns_cselect_b32 s{sK}, 0, s{sK}", f"s_lshl_b32 s{sXO}, s{sK}, 7"]
        return out + self.kset(role)

    def kset(self, role):
        if role == "F":
            return [f"s_mul_i32 s{sWO0}, s{sK}, {64*3456}"]
        return [f"s_add_u32 s{sWO1}, s{sXO}, 10240\ns_add_u32 s{sWO2}, s{sXO}, 20480"]

    def dma(self, dst, text, tag):
        return ("pre", f"s_add_u32 m0, s{sQ}, {dst}", ("vm", text, tag))

    def stage_dmas(self, role, st):
        sl = 10240 * (st % 3)
        tag = f"st{st}"
        out = []
        for jx in range(4):
            il, nh = jx >> 1, jx & 1
            out.append(self.dma(sl + 1024 * jx - 1280 * il, f"buffer_load_dwordx4 v{vXV[nh]}, {srd(SRD_X)}, s{sXO} offen offset:{1280*il} lds", tag))
        for a in range(3):
            for b in range(2):
                dst = sl + 4096 + 2048 * a + 1024 * b
                if role == "F":
                    out.append(self.dma(dst - 128 * a, f"buffer_load_dwordx4 v{vWV[b]}, {srd(SRD_A)}, s{sWO0} offen offset:{128*a} lds", tag))
                else:
                    so = (sXO, sWO1, sWO2)[a]
                    out.append(self.dma(dst, f"buffer_load_dwordx4 v{vWV[b]}, {srd((SRD_A, SRD_B)[b])}, s{so} offen lds", tag))
        return out

    def c_dmas(self, u, chunk):
        out = []
        for jj in range(10):
            out.append(self.dma(10240 * chunk + 1024 * jj, f"buffer_load_dwordx4 v{vCV[jj&1]}, {srd(SRD_C)}, s{sCT[jj>>1]} offen lds", f"C{u}"))
        out.append(f"v_add_u32 v{vCV[0]}, 128, v{vCV[0]}\nv_add_u32 v{vCV[1]}, 128, v{vCV[1]}")
        return out

    def c_readout(self, u, chunk):
        return [f"ds_read_b128 {ar((2*u+s)*20+4*t,4)}, v{vCA[s]} offset:{10240*chunk+2048*t}" for s in range(2) for t in range(5)]

    W2CH = [3, 0, 1, 2, 3, 0, 1]

    def w2slot(self, j):
        return 10240 * self.W2CH[j >> 1] + 5120 * (j & 1)

    def w2_dmas(self, j):
        d = self.w2slot(j)
        va, vb = (vL16, vL16B)
        out = []
        if j == 13:
            out.append(f"s_cmp_ge_u32 s{sW}, 2\ns_cselect_b32 s{sT0}, {OOB}, 0\nv_add_u32 v{vL16}, s{sT0}, v{vL16}\nv_add_u32 v{vL16B}, s{sT0}, v{vL16B}")
        out.append(self.dma(d, f"buffer_load_dwordx4 v{va}, {srd(SRD_WS)}, s{sW2} offen sc1 lds", f"W{j}"))
        for e in (1, 2, 3):
            out.append(("vm", f"buffer_load_dwordx4 v{va}, {srd(SRD_WS)}, s{sW2} offen offset:{1024*e} sc1 lds", f"W{j}"))
        out.append(self.dma(d + 4096, f"buffer_load_dwordx4 v{vb}, {srd(SRD_WS)}, s{sW2} offen sc1 lds", f"W{j}"))
        out.append(f"s_add_u32 s{sW2}, s{sW2}, 20480")
        return out

    def flat(self, items):
        for it in items:
            if isinstance(it, tuple) and it[0] == "pre":
                self.A.item(it[1])
                self.A.item(it[2])
            else:
                self.A.item(it)

    def frag_reads(self, role, st, sub):
        sl = 10240 * (st % 3)
        out = []
        for T in range(3):
            if role == "F":
                for h in range(2):
                    out.append(f"ds_read_b64_tr_b16 {ar(aWB[sub]+4*T+2*h,2)}, v{vWA+3*sub+T} offset:{sl+512*h}")
            else:
                out.append(f"ds_read_b128 {ar(aWB[sub]+4*T,4)}, v{vWA+sub} offset:{sl+2048*T}")
        for i in range(8):
            out.append(f"ds_read_b128 {ar(aXB[sub]+4*i,4)}, v{vXA[sub][i>>2]} offset:{((i>>1)&1)*40960+sl+(i&1)*2048}")
        return out

    def mfmas1(self, sub, first):
        out = []
        for T in range(3):
            c = "0" if first else vr(vCS + 4 * T, 4)
            out.append(f"v_mfma_f32_16x16x32_bf16 {vr(vCS+4*T,4)}, {ar(aWB[sub]+4*T,4)}, {ar(aONE,4)}, {c}")
        for i in range(8):
            for T in range(3):
                c = "0" if first else vr(acc(i, T), 4)
                out.append(f"v_mfma_f32_16x16x32_bf16 {vr(acc(i,T),4)}, {ar(aWB[sub]+4*T,4)}, {ar(aXB[sub]+4*i,4)}, {c}")
        return out

    def gemm1(self, role, mid_hooks):
        A = self.A
        groups = {s: self.kadv(role) + self.stage_dmas(role, s) for s in range(2, 10)}
        groups[10] = self.c_dmas(0, 1)
        groups[11] = self.c_dmas(1, 2)
        groups[12] = self.c_dmas(2, 0)

        def halves(g):
            idx = [i for i, it in enumerate(g) if isinstance(it, tuple)]
            cut = idx[5]
            return g[:cut], g[cut:]
        A.wait_vm("st0")
        A("s_barrier")
        self.stamp(1)
        for r in self.frag_reads(role, 0, 0):
            A(r)
        for st in range(10):
            A("s_waitcnt lgkmcnt(0)")
            d = groups[2] if st == 0 else halves(groups[st + 2])[1]
            A.weave(self.mfmas1(0, st == 0), [(self.frag_reads(role, st, 1), 0.0, 0.62), (d, 0.05, 1.0)])
            pre, post = mid_hooks.get(st, (None, []))
            A.wait_vm(f"st{st+1}" if st < 9 else "C0", lgkm=0)
            if pre:
                pre()
            A("s_barrier")
            rd = self.frag_reads(role, st + 1, 0) if st < 9 else self.c_readout(0, 1)
            A.weave(self.mfmas1(1, False), [(post, 0.0, 0.3), (rd, 0.0, 0.62), (halves(groups[st + 3])[0], 0.1, 1.0)])
        self.stamp(2)
        return halves(groups[12])[1]

    def hooks(self, role, first_post):
        A = self.A
        hk = {}
        hk[0] = (None, first_post)

        def arrive_pre():
            A.wait_vm("pre")

        def arrive():
            A(f"s_cmp_lg_u32 s{sW}, 0\ns_cbranch_scc1 L_arr{role}")
            A(f"s_and_b32 s{sT0}, s2, 1\ns_lshl_b32 s{sT0}, s{sT0}, 7\nv_mov_b32 v{vT}, s{sT0}\nv_mov_b32 v{vT+1}, 1\ns_mov_b64 exec, 1\ns_nop 0")
            A.vmem(f"global_atomic_add v{vT}, v{vT+1}, s[{P_DBG}:{P_DBG+1}] sc1", "arr", True)
            A(f"s_mov_b64 exec, -1\nL_arr{role}:\ns_nop 4")
        hk[2] = (arrive_pre, [arrive])

        def poll_issue():
            A(f"s_cmp_lg_u32 s{sW}, 0\ns_cbranch_scc1 L_pi{role}")
            A(f"v_and_b32 v{vT}, 1, v0\nv_lshlrev_b32 v{vT}, 7, v{vT}")
            A.vmem(f"global_load_dword v{vPL}, v{vT}, s[{P_DBG}:{P_DBG+1}] sc1", "cnt", True)
            A(f"L_pi{role}:")
        hk[6] = (None, [poll_issue])

        def poll_check():
            A.wait_vm("cnt")
            A(f"s_cmp_lg_u32 s{sW}, 0\ns_cbranch_scc1 L_pc{role}\ns_mov_b32 s{sT0}, 0")
            A(f"L_pl{role}:\nv_cmp_ne_u32 vcc, 0x80, v{vPL}\ns_nop 4\ns_cbranch_vccz L_pc{role}")
            A(f"global_load_dword v{vPL}, v{vT}, s[{P_DBG}:{P_DBG+1}] sc1\ns_waitcnt vmcnt(0)")
            A(f"s_add_u32 s{sT0}, s{sT0}, 1\ns_cmp_lt_u32 s{sT0}, {SPIN}\ns_cbranch_scc1 L_pl{role}")
            A(f"L_pc{role}:")
        st_items = [f"s_lshl_b32 s{sT0}, s{sRB}, 10\ns_add_u32 s{sT0}, s{sT0}, {WS_ST}\nv_lshlrev_b32 v{vT+1}, 6, v{vN}"]
        for k in range(4):
            st_items.append(("vm", f"buffer_load_dwordx4 {vr(vST+4*k,4)}, v{vT+1}, {srd(SRD_WS)}, s{sT0} offen offset:{16*k} sc1", "stats"))
        hk[7] = (poll_check, st_items)
        return hk

    def flag_addr(self, slot_add):
        return f"s_lshl_b32 s{sT0}, s{sRB}, 4\ns_add_u32 s{sT0}, s{sT0}, s{sIDX}\ns_lshl_b32 s{sT0}, s{sT0}, 7\ns_add_u32 s{sT0}, s{sT0}, {WS_FL + slot_add*128}"

    def flag_store(self, slot_add, val, tag, lbl):
        A = self.A
        A(f"s_cmp_lg_u32 s{sW}, 0\ns_cbranch_scc1 {lbl}")
        A(self.flag_addr(slot_add))
        A(f"v_mov_b32 v{vT}, 0\nv_mov_b32 v{vT+1}, {val}\ns_mov_b64 exec, 1\ns_nop 0")
        A.vmem(f"buffer_store_dword v{vT+1}, v{vT}, {srd(SRD_WS)}, s{sT0} offen sc1", tag, True)
        A(f"s_mov_b64 exec, -1\n{lbl}:\ns_nop 4")

    def role_ffn(self):
        A = self.A
        j8, c8, t0, t1 = vT, vT + 1, vT + 2, vT + 3
        A(f"s_mov_b32 s{SRD_A}, s{P_W1}\ns_mov_b32 s{SRD_A+1}, s{P_W1+1}\ns_mov_b32 s{SRD_A+2}, 2211840")
        A(f"s_mov_b32 s{SRD_B}, s{P_W2}\ns_mov_b32 s{SRD_B+1}, s{P_W2+1}\ns_mov_b32 s{SRD_B+2}, 2211840")
        A(f"s_mul_i32 s{sT0}, s{sW}, {16*3456}\ns_mul_i32 s{sT3}, s{sIDX}, 384\ns_add_u32 s{sT0}, s{sT0}, s{sT3}")
        A(f"v_and_b32 v{t0}, 2, v{j8}\nv_xor_b32 v{t0}, v{t0}, v{c8}\nv_lshlrev_b32 v{t0}, 4, v{t0}\nv_mul_u32_u24 v{t1}, 3456, v{j8}")
        A(f"v_add3_u32 v{vWV[0]}, v{t1}, v{t0}, s{sT0}\nv_xor_b32 v{vWV[1]}, 64, v{vWV[0]}\nv_add_u32 v{vWV[1]}, {8*3456}, v{vWV[1]}")
        self.flat(self.kset("F") + self.stage_dmas("F", 0))
        A(f"s_mul_i32 s{sT0}, s{sIDX}, 384\ns_mul_i32 s{sT3}, s{sW}, 96\ns_add_u32 s{sT0}, s{sT0}, s{sT3}\nv_lshl_add_u32 v{t0}, v{vQ4}, 3, s{sT0}")
        for T in range(3):
            A.vmem(f"global_load_dwordx2 {vr(B1+12+2*T,2)}, v{t0}, s[{P_B1}:{P_B1+1}] offset:{32*T}", "b1")
        self.late_setup()
        r, c, ph, b = vT + 8, vT + 9, vT + 10, vT + 11
        A(f"v_lshrrev_b32 v{r}, 2, v{vN}\nv_and_b32 v{c}, 3, v{vN}\nv_and_b32 v{t0}, 1, v{vQ4}\nv_lshrrev_b32 v{t1}, 1, v{vQ4}")
        A(f"v_lshrrev_b32 v{ph}, 1, v{r}\nv_lshl_add_u32 v{ph}, v{t0}, 1, v{ph}")
        A(f"v_mul_u32_u24 v{b}, 40960, v{t1}\nv_lshl_add_u32 v{b}, v{t0}, 10, v{b}\nv_lshl_add_u32 v{b}, v{r}, 7, v{b}\nv_lshl_add_u32 v{b}, v{c}, 3, v{b}")
        for T in range(3):
            A(f"s_mul_i32 s{sT0}, s{sW}, 3\ns_add_u32 s{sT0}, s{sT0}, {T}\ns_and_b32 s{sT3}, s{sT0}, 3\ns_lshr_b32 s{sT0}, s{sT0}, 2\ns_lshl_b32 s{sT0}, s{sT0}, 11\ns_add_u32 s{sT0}, s{sT0}, 4096")
            A(f"v_xor_b32 v{r}, s{sT3}, v{ph}\nv_lshlrev_b32 v{r}, 5, v{r}\nv_add3_u32 v{vWA+T}, v{b}, v{r}, s{sT0}\nv_add_u32 v{vWA+3+T}, 81920, v{vWA+T}")
        A(f"s_mul_i32 s{sT0}, s{sRB}, {8*HT}\ns_mul_i32 s{sT3}, s{sIDX}, {24*256}\ns_add_u32 s{sT0}, s{sT0}, s{sT3}\ns_mul_i32 s{sT3}, s{sW}, {6*256}\ns_add_u32 s{sT0}, s{sT0}, s{sT3}")
        A(f"v_mul_u32_u24 v{b}, {HT}, v{t0}\nv_lshl_add_u32 v{b}, v{t1}, 8, v{b}\nv_lshl_add_u32 v{b}, v{vN}, 4, v{b}\nv_add_u32 v{vHS[0]}, s{sT0}, v{b}")
        self.stats_compute()
        self.flag_store(0, 0, "pre", "L_frF")
        RV = KC + 24
        for e in range(5):
            A(f"v_add_u32 v{t0}, {64*e}, v0\nv_mul_u32_u24 v{t1}, 6554, v{t0}\nv_lshrrev_b32 v{t1}, 16, v{t1}")
            A(f"v_mul_u32_u24 v{r}, 10, v{t1}\nv_sub_u32 v{t0}, v{t0}, v{r}")
            A(f"v_and_b32 v{r}, 0x13, v{t1}\nv_bfe_u32 v{c}, v{t1}, 2, 1\nv_lshl_add_u32 v{r}, v{c}, 3, v{r}\nv_bfe_u32 v{c}, v{t1}, 3, 1\nv_lshl_add_u32 v{r}, v{c}, 2, v{r}")
            A(f"v_mul_u32_u24 v{r}, 1280, v{r}\nv_lshl_add_u32 v{RV+e}, v{t0}, 4, v{r}")
        A(f"s_mul_i32 s{sT0}, s{sRB}, 9\ns_add_u32 s{sT0}, s{sT0}, s{sIDX}\ns_lshl_b32 s{sT0}, s{sT0}, 2\ns_add_u32 s{sT0}, s{sT0}, s{sW}")
        A(f"s_and_b32 s{sT1}, s{sT0}, 7\ns_lshr_b32 s{sT2}, s{sT0}, 3\ns_cmp_lt_u32 s{sT0}, 432\ns_cselect_b32 s{sT3}, 0, {OOB}\ns_cselect_b32 s{sT2}, s{sT2}, 0")
        A(f"v_add_u32 v{RV+5}, s{sT3}, v{vL16}\nv_add_u32 v{RV+6}, s{sT3}, v{vL16B}")
        A(f"s_mul_i32 s{sT0}, s{sT2}, 40960\ns_mul_i32 s{sT3}, s{sT1}, 160\ns_add_u32 s{sT0}, s{sT0}, s{sT3}")
        A(f"s_mul_i32 s{sT1}, s{sT1}, 54\ns_add_u32 s{sT1}, s{sT1}, s{sT2}\ns_mul_i32 s{sT1}, s{sT1}, 5120\ns_add_u32 s{sT1}, s{sT1}, {WS_W2}")
        for e in range(5):
            A.vmem(f"buffer_load_dwordx4 {ar(4*e,4)}, v{RV+e}, {srd(SRD_B)}, s{sT0} offen", "rt")
        self.flat(self.kadv("F") + self.stage_dmas("F", 1))
        A.wait_vm("b1")
        for k in range(6):
            A(f"v_lshlrev_b32 v{B1+2*k}, 16, v{B1+12+k}\nv_and_b32 v{B1+2*k+1}, 0xffff0000, v{B1+12+k}")
        rt = []
        for e in range(5):
            rt.append(("vm", f"buffer_store_dwordx4 {ar(4*e,4)}, v{RV+5+(e>>2)}, {srd(SRD_WS)}, s{sT1} offen offset:{1024*(e&3)} sc1", "pre"))
        rest = self.gemm1("F", self.hooks("F", rt))
        A.wait_vm("stats", lgkm=0)
        body = []
        O = vT
        for ip in range(4):
            for T in range(3):
                o = O + 4 * ((ip * 3 + T) % 4)
                prs = [(2 * ip + ii, hp) for ii in range(2) for hp in range(2)]
                R = lambda i, hp: vr(acc(i, T) + 2 * hp, 2)
                for i, hp in prs:
                    body.append(f"v_pk_fma_f32 {R(i,hp)}, {vr(vST+2*i,2)}, {vr(vCS+4*T+2*hp,2)}, {R(i,hp)} op_sel_hi:[0,1,1] neg_lo:[1,0,0] neg_hi:[1,0,0]")
                for i, hp in prs:
                    body.append(f"v_pk_fma_f32 {R(i,hp)}, {vr(vST+2*i,2)}, {R(i,hp)}, {vr(B1+4*T+2*hp,2)} op_sel:[1,0,0] op_sel_hi:[1,1,1]")
                for i, hp in prs:
                    for e in range(2):
                        rr = acc(i, T) + 2 * hp + e
                        body.append(f"v_max_f32 v{rr}, 0, v{rr}")
                for i, hp in prs:
                    body.append(f"v_pk_mul_f32 {R(i,hp)}, {R(i,hp)}, {R(i,hp)}")
                for k, (i, hp) in enumerate(prs):
                    rr = acc(i, T) + 2 * hp
                    body.append(f"v_cvt_pk_bf16_f32 v{o+k}, v{rr}, v{rr+1}")
                if T == 0:
                    body.append(f"s_mov_b32 s{sT0}, {2*ip*HT}")
                body.append(f"v_permlane16_swap_b32 v{o}, v{o+2}")
                body.append(f"v_permlane16_swap_b32 v{o+1}, v{o+3}")
                body.append(("vm", f"buffer_store_dwordx4 {vr(o,4)}, v{vHS[0]}, {srd(SRD_WS)}, s{sT0} offen offset:{512*T} sc1", "H"))
        A.weave(body, [(rest, 0.0, 0.15)])
        self.stamp(3)
        self.flat(self.w2_dmas(0) + self.w2_dmas(1))
        A.wait_vm("H")
        A("s_barrier")
        self.flag_store(0, 1, "fl", "L_fsF")
        self.stamp(4)
        for x in self.c_readout(1, 2) + self.c_readout(2, 0):
            A(x)
        self.flat(self.c_dmas(3, 1))
        A("s_waitcnt lgkmcnt(0)")
        self.flat(self.c_dmas(4, 2) + self.w2_dmas(2) + self.w2_dmas(3))
        A("s_branch L_join")

    def cmul_acc(self, d, p, h, c):
        return [f"v_pk_fma_f32 {vr(d,2)}, {vr(p,2)}, {vr(h,2)}, {vr(c,2)} op_sel_hi:[0,1,1]",
                f"v_pk_fma_f32 {vr(d,2)}, {vr(p,2)}, {vr(h,2)}, {vr(d,2)} op_sel:[1,1,0] op_sel_hi:[1,0,1] neg_lo:[1,0,0]"]

    def cmul(self, d, p, h, t=None):
        t = d if t is None else t
        return [f"v_pk_mul_f32 {vr(t,2)}, {vr(p,2)}, {vr(h,2)} op_sel_hi:[0,1]",
                f"v_pk_fma_f32 {vr(d,2)}, {vr(p,2)}, {vr(h,2)}, {vr(t,2)} op_sel:[1,1,0] op_sel_hi:[1,0,1] neg_lo:[1,0,0]"]

    @staticmethod
    def col(lists):
        return [l[k] for k in range(len(lists[0])) for l in lists]

    def power(self, d, c, tau, t):
        return [f"v_pk_mul_f32 {vr(t,2)}, {vr(AB+2*c,2)}, {vr(tau,2)} op_sel_hi:[1,0]",
                f"v_exp_f32 v{t}, v{t}", f"v_fract_f32 v{t+1}, v{t+1}",
                f"v_cos_f32 v{d}, v{t+1}", f"v_sin_f32 v{d+1}, v{t+1}",
                f"v_pk_mul_f32 {vr(d,2)}, {vr(d,2)}, {vr(t,2)} op_sel_hi:[1,0]"]

    def role_ssm(self):
        A = self.A
        j8, c8, t0, t1 = vT, vT + 1, vT + 2, vT + 3
        A("L_ssm:")
        A(f"s_sub_u32 s{sIDX}, s{sIDX}, 2\ns_min_u32 s{sIDX}, s{sIDX}, 6")
        A(f"s_mul_i32 s{sT1}, s{sIDX}, 96\ns_mul_i32 s{sT3}, s{sW}, 24\ns_add_u32 s{sT1}, s{sT1}, s{sT3}")
        RAW = ACC + 64
        A(f"s_lshl_b32 s{sT0}, s{sT1}, 1\nv_lshl_add_u32 v{t0}, v{vQ4}, 2, s{sT0}")
        for T in range(3):
            A(f"v_add_u32 v{vT+8+T}, {16*T}, v{t0}\nv_min_u32 v{vT+8+T}, 1276, v{vT+8+T}")
        for a, p in enumerate((P_LDT, P_LRE, P_LIM)):
            for T in range(3):
                A.vmem(f"global_load_dword v{RAW+3*a+T}, v{vT+8+T}, s[{p}:{p+1}]", "lam")
        A(f"s_mov_b32 s{SRD_A}, s{P_BRE}\ns_mov_b32 s{SRD_A+1}, s{P_BRE+1}\ns_mov_b32 s{SRD_A+2}, 819200")
        A(f"s_mov_b32 s{SRD_B}, s{P_BIM}\ns_mov_b32 s{SRD_B+1}, s{P_BIM+1}\ns_mov_b32 s{SRD_B+2}, 819200")
        A(f"s_mul_i32 s{sT0}, s{sT1}, 1280")
        A(f"v_and_b32 v{t0}, 6, v{j8}\nv_xor_b32 v{t0}, v{t0}, v{c8}\nv_lshlrev_b32 v{t0}, 4, v{t0}\nv_mul_u32_u24 v{t1}, 1280, v{j8}")
        A(f"v_add3_u32 v{vWV[0]}, v{t1}, v{t0}, s{sT0}\nv_xor_b32 v{vWV[1]}, 16, v{vWV[0]}")
        self.flat(self.kset("S") + self.stage_dmas("S", 0))
        self.late_setup()
        b, c = vT + 8, vT + 9
        A(f"v_and_b32 v{t0}, 1, v{vN}\nv_lshrrev_b32 v{t1}, 1, v{vN}\nv_and_b32 v{c}, 6, v{t1}\nv_or_b32 v{c}, v{c}, v{t0}\nv_xor_b32 v{c}, v{c}, v{vQ4}")
        A(f"v_lshlrev_b32 v{b}, 10, v{t0}\nv_lshl_add_u32 v{b}, v{t1}, 7, v{b}\nv_lshl_add_u32 v{b}, v{c}, 4, v{b}")
        A(f"s_add_u32 s{sT0}, s{sQ}, 4096\nv_add_u32 v{vWA}, s{sT0}, v{b}\nv_xor_b32 v{vWA+1}, 64, v{vWA}")
        A(f"s_lshr_b32 s{sT2}, s{sT1}, 3\ns_mul_i32 s{sT0}, s{sRB}, {8*HT}\ns_lshl_b32 s{sT3}, s{sT2}, 8\ns_add_u32 s{sT0}, s{sT0}, s{sT3}\ns_add_u32 s{sT0}, s{sT0}, {216*256}")
        A(f"v_lshrrev_b32 v{t0}, 1, v{vQ4}\nv_and_b32 v{t1}, 1, v{vQ4}\nv_mul_u32_u24 v{b}, {HT}, v{t0}\nv_mul_u32_u24 v{t1}, {80*256}, v{t1}")
        A(f"v_lshl_add_u32 v{b}, v{vN}, 4, v{b}\nv_add3_u32 v{b}, v{b}, v{t1}, s{sT0}")
        for T in range(3):
            A(f"s_cmp_lt_u32 s{sT2}, {80-T}\ns_cselect_b32 s{sT3}, 0, {OOB}\nv_add_u32 v{vHS[T]}, s{sT3}, v{b}")
        A(f"s_lshl_b32 s{sT0}, s{sIDX}, 14\ns_lshl_b32 s{sT3}, s{sW}, 8\ns_add_u32 s{sT0}, s{sT0}, s{sT3}\ns_add_u32 s{sT0}, s{sT0}, {WS_AG}")
        A(f"v_lshl_add_u32 v{t0}, v{vQ4}, 4, s{sT0}\nv_mov_b32 v{c}, {OOB}")
        A(f"v_lshl_add_u32 v{t1}, v{vN}, 10, v{t0}\nv_cmp_gt_u32 vcc, s{sRB}, v{vN}\nv_cndmask_b32 v{vAL}, v{c}, v{t1}, vcc")
        A(f"s_lshl_b32 s{sT3}, s{sRB}, 10\nv_add_u32 v{t0}, s{sT3}, v{t0}\nv_cmp_eq_u32 vcc, 15, v{vN}\nv_cndmask_b32 v{vAG}, v{c}, v{t0}, vcc")
        for k in range(4):
            A(f"v_mov_b32 v{vT+12+k}, -1")
        for T in range(3):
            A.vmem(f"buffer_store_dwordx4 {vr(vT+12,4)}, v{vAG}, {srd(SRD_WS)}, 0 offen offset:{64*T} sc1", "pre")
        self.stats_compute()
        self.flag_store(9, 0, "pre", "L_frS")
        A.wait_vm("lam")
        TMP = ACC
        L = []
        for ch in range(6):
            T, e = ch >> 1, ch & 1
            un = (lambda d, s: f"v_and_b32 v{d}, 0xffff0000, v{s}") if e else (lambda d, s: f"v_lshlrev_b32 v{d}, 16, v{s}")
            t = TMP + 8 * ch
            lam, ab, kap = LAM + 2 * ch, AB + 2 * ch, KAP + 2 * ch
            p = lambda k: P8 + 12 * k + 2 * ch
            l = [un(t, RAW + T), un(t + 2, RAW + 3 + T), un(t + 3, RAW + 6 + T),
                 f"v_mul_f32 v{t}, {f2u(1.4426950408889634)}, v{t}", f"v_exp_f32 v{t}, v{t}",
                 f"v_cvt_pk_bf16_f32 v{t}, v{t}, v{t}", f"v_lshlrev_b32 v{t}, 16, v{t}",
                 f"v_pk_mul_f32 {vr(ab,2)}, {vr(t+2,2)}, {vr(t,2)} op_sel_hi:[1,0]",
                 f"v_mul_f32 v{ab}, {f2u(1.4426950408889634)}, v{ab}", f"v_mul_f32 v{ab+1}, 0.15915494, v{ab+1}",
                 f"v_exp_f32 v{t}, v{ab}", f"v_fract_f32 v{t+1}, v{ab+1}",
                 f"v_cos_f32 v{lam}, v{t+1}", f"v_sin_f32 v{lam+1}, v{t+1}",
                 f"v_pk_mul_f32 {vr(lam,2)}, {vr(lam,2)}, {vr(t,2)} op_sel_hi:[1,0]",
                 f"v_mul_f32 v{t}, v{t+2}, v{t+2}", f"v_fmac_f32 v{t}, v{t+3}, v{t+3}", f"v_rcp_f32 v{t}, v{t}",
                 f"v_add_f32 v{t+4}, -1.0, v{lam}", f"v_mov_b32 v{t+5}, v{lam+1}", f"v_add_f32 v{t}, v{t}, v{t}",
                 f"v_pk_mul_f32 {vr(kap,2)}, {vr(t+2,2)}, {vr(t+4,2)} op_sel_hi:[0,1]",
                 f"v_pk_fma_f32 {vr(kap,2)}, {vr(t+2,2)}, {vr(t+4,2)}, {vr(kap,2)} op_sel:[1,1,0] op_sel_hi:[1,0,1] neg_hi:[1,0,0]",
                 f"v_pk_mul_f32 {vr(kap,2)}, {vr(kap,2)}, {vr(t,2)} op_sel_hi:[1,0]"]
            l += self.cmul(t, lam, lam) + self.cmul(t + 2, t, t) + self.cmul(p(0), t + 2, t + 2)
            for k in range(3):
                l += self.cmul(p(k + 1), p(k), p(k))
            L.append(l)
        for x in self.col(L):
            A(x)
        A(f"s_mul_i32 s{sT0}, s{sRB}, 7\ns_add_u32 s{sT0}, s{sT0}, s{sIDX}\ns_lshl_b32 s{sT0}, s{sT0}, 1\ns_and_b32 s{sT3}, s{sW}, 1\ns_add_u32 s{sT0}, s{sT0}, s{sT3}\ns_lshl_b32 s{sT0}, s{sT0}, 12")
        A(f"v_and_b32 v{t0}, 31, v0\nv_lshl_add_u32 v{t0}, v{t0}, 7, s{sT0}")
        A.vmem(f"buffer_load_dword a0, v{t0}, {srd(SRD_C)}, 0 offen", "touch")
        self.flat(self.kadv("S") + self.stage_dmas("S", 1))
        rest = self.gemm1("S", self.hooks("S", []))
        A.wait_vm("stats", lgkm=0)
        U = lambda i, ch: acc(i, ch >> 1) + 2 * (ch & 1)
        body = []
        for i in range(8):
            body += self.col([[f"v_pk_fma_f32 {vr(U(i,ch),2)}, {vr(vST+2*i,2)}, {vr(vCS+2*ch,2)}, {vr(U(i,ch),2)} op_sel_hi:[0,1,1] neg_lo:[1,0,0] neg_hi:[1,0,0]",
                               f"v_pk_mul_f32 {vr(U(i,ch),2)}, {vr(vST+2*i,2)}, {vr(U(i,ch),2)} op_sel:[1,0] op_sel_hi:[1,1]"] for ch in range(6)])
        G = [vT, vCS]
        for i in range(1, 8):
            body += self.col([self.cmul_acc(G[i & 1] + 2 * ch, LAM + 2 * ch, (U(0, ch) if i == 1 else G[(i - 1) & 1] + 2 * ch), U(i, ch)) for ch in range(6)])
        S_, D_ = G[1], G[0]
        for k, d in enumerate((1, 2, 4, 8)):
            body += [f"v_mov_b32_dpp v{D_+r}, v{S_+r} row_shr:{d} row_mask:0xf bank_mask:0xf bound_ctrl:1" for r in range(12)]
            body += self.col([self.cmul_acc(S_ + 2 * ch, P8 + 12 * k + 2 * ch, D_ + 2 * ch, S_ + 2 * ch) for ch in range(6)])
        A.weave(body, [(rest, 0.0, 0.2)])
        for T in range(3):
            A.vmem(f"buffer_store_dwordx4 {vr(S_+4*T,4)}, v{vAG}, {srd(SRD_WS)}, 0 offen offset:{64*T} sc1", "agg")
        self.stamp(3)
        E_, Rn, Qn, TT = D_, P8, P8 + 12, P8 + 24
        TAU = vST
        b = [f"v_mov_b32_dpp v{TT+r}, v{S_+r} row_shr:1 row_mask:0xf bank_mask:0xf bound_ctrl:1" for r in range(12)]
        b += self.col([self.cmul(E_ + 2 * ch, KAP + 2 * ch, TT + 2 * ch) for ch in range(6)])
        b += [f"v_lshlrev_b32 v{TAU}, 3, v{vN}", f"v_cvt_f32_u32 v{TAU}, v{TAU}",
              f"s_sub_u32 s{sT0}, s{sRB}, 1", f"v_sub_u32 v{TAU+2}, s{sT0}, v{vN}", f"v_max_i32 v{TAU+2}, 0, v{TAU+2}",
              f"v_lshlrev_b32 v{TAU+2}, 7, v{TAU+2}", f"v_cvt_f32_u32 v{TAU+2}, v{TAU+2}"]
        b += self.col([self.power(TT + 12 + 2 * ch, ch, TAU, TT + 2 * ch) for ch in range(6)])
        b += self.col([self.cmul(Rn + 2 * ch, KAP + 2 * ch, TT + 12 + 2 * ch) for ch in range(6)])
        b += self.col([self.power(Qn + 2 * ch, ch, TAU + 2, TT + 2 * ch) for ch in range(6)])
        for i in range(8):
            b += self.col([self.cmul(U(i, ch), KAP + 2 * ch, U(i, ch), TT + 2 * ch) for ch in range(6)])
        A.wait_vm("C2")
        A.weave(b, [(self.c_readout(1, 2) + self.c_readout(2, 0), 0.0, 0.1), (self.w2_dmas(0) + self.w2_dmas(1), 0.0, 0.6)])
        AG = vST
        A(f"s_mov_b32 s{sT0}, 0\nL_agg:")
        for T in range(3):
            A(f"buffer_load_dwordx4 {vr(AG+4*T,4)}, v{vAL}, {srd(SRD_WS)}, 0 offen offset:{64*T} sc1")
        A.wait_all()
        A(f"v_max3_u32 v{TT}, v{AG}, v{AG+1}, v{AG+2}\nv_max3_u32 v{TT+1}, v{AG+3}, v{AG+4}, v{AG+5}\nv_max3_u32 v{TT+2}, v{AG+6}, v{AG+7}, v{AG+8}\nv_max3_u32 v{TT+3}, v{AG+9}, v{AG+10}, v{AG+11}")
        A(f"v_max3_u32 v{TT}, v{TT}, v{TT+1}, v{TT+2}\nv_max_u32 v{TT}, v{TT}, v{TT+3}\nv_cmp_eq_u32 vcc, -1, v{TT}")
        A(f"s_add_u32 s{sT0}, s{sT0}, 1\ns_cmp_ge_u32 s{sT0}, {SPIN}\ns_cbranch_scc1 L_aggd\ns_nop 2\ns_cbranch_vccnz L_agg\nL_aggd:")
        self.stamp(4)
        A("s_waitcnt lgkmcnt(0)")
        b = self.col([self.cmul(TT + 2 * ch, Qn + 2 * ch, AG + 2 * ch) for ch in range(6)])
        for d in (8, 4, 2, 1):
            b += [f"v_add_f32_dpp v{TT+r}, v{TT+r}, v{TT+r} row_ror:{d} row_mask:0xf bank_mask:0xf" for r in range(12)]
        b += self.col([self.cmul_acc(E_ + 2 * ch, Rn + 2 * ch, TT + 2 * ch, E_ + 2 * ch) for ch in range(6)])
        n0 = len(b)
        O = P8 + 24
        for ip in range(4):
            for i in (2 * ip, 2 * ip + 1):
                b += self.col([self.cmul_acc(U(i, ch), LAM + 2 * ch, (E_ + 2 * ch if i == 0 else U(i - 1, ch)), U(i, ch)) for ch in range(6)])
            b.append(f"s_mov_b32 s{sT0}, {2*ip*HT}")
            o = lambda T: O + 12 * (ip & 1) + 4 * T
            for T in range(3):
                for ii in range(2):
                    z = acc(2 * ip + ii, T)
                    b.append(f"v_cvt_pk_bf16_f32 v{o(T)+2*ii}, v{z}, v{z+2}")
                    b.append(f"v_cvt_pk_bf16_f32 v{o(T)+2*ii+1}, -v{z+1}, -v{z+3}")
            for T in range(3):
                b += [f"v_permlane16_swap_b32 v{o(T)}, v{o(T)+1}", f"v_permlane16_swap_b32 v{o(T)+2}, v{o(T)+3}"]
            for T in range(3):
                b += [f"v_permlane32_swap_b32 v{o(T)}, v{o(T)+2}", f"v_permlane32_swap_b32 v{o(T)+1}, v{o(T)+3}"]
                b.append(("vm", f"buffer_store_dwordx4 {vr(o(T),4)}, v{vHS[T]}, {srd(SRD_WS)}, s{sT0} offen offset:{256*T} sc1", "H"))
        A.weave(b, [(self.c_dmas(3, 1), 0.0, 0.45)])
        self.flat(self.c_dmas(4, 2) + self.w2_dmas(2) + self.w2_dmas(3))

    def h_loads(self, j):
        out = []
        v = vHV
        if j == 13:
            out.append(f"s_cmp_ge_u32 s{sW}, 2\ns_cselect_b32 s{sT0}, {OOB}, 0\nv_add_u32 v{vHV}, s{sT0}, v{vHV}")
        if j >= 14:
            v = vHVX
        off = 0 if j < 14 else 1024 * ((j - 14) & 3)
        for s in range(4):
            out.append(("vm", f"buffer_load_dwordx4 {vr(HR+16*(j&3)+4*s,4)}, v{v}, {srd(SRD_WS)}, s{sHT[s]} offen offset:{off} sc1", f"H{j}"))
        if j < 13:
            out.append(f"v_add_u32 v{vHV}, 4096, v{vHV}")
        elif j >= 14 and ((j - 14) & 3) == 3:
            out.append(f"v_add_u32 v{vHVX}, 4096, v{vHVX}")
        return out

    def w2_reads(self, j):
        return [f"ds_read_b64_tr_b16 {ar(aW2[j&1]+4*t+2*h,2)}, v{vTR} offset:{self.w2slot(j)+1280*h+32*t}" for t in range(5) for h in range(2)]

    def mfmas2(self, j):
        out = []
        for s in range(4):
            for t in range(5):
                d = ACC2 + (s * 5 + t) * 4
                a = ar(aW2[j & 1] + 4 * t, 4) if j < 14 else ar((j - 14) * 20 + 4 * t, 4)
                out.append(f"v_mfma_f32_16x16x32_bf16 {vr(d,4)}, {a}, {vr(HR+16*(j&3)+4*s,4)}, {'0' if j == 0 else vr(d,4)}")
        return out

    def base_code(self):
        X, DK, B2, ST = BIN, BIN + 10, BIN + 20, BIN + 30
        out = []
        for k in range(10):
            t = BT + 6 * (k & 1)
            xf = BASE + 2 * k
            unp = lambda d, s: [f"v_lshlrev_b32 v{d}, 16, v{s}", f"v_and_b32 v{d+1}, 0xffff0000, v{s}"]
            rnd = lambda d: [f"v_cvt_pk_bf16_f32 v{t+4}, v{d}, v{d+1}"] + unp(d, t + 4)
            out += unp(xf, X + k)
            out += [f"v_pk_add_f32 {vr(t,2)}, {vr(xf,2)}, {vr(ST,2)} op_sel_hi:[1,0] neg_lo:[0,1] neg_hi:[0,1]"] + rnd(t)
            out += [f"v_pk_mul_f32 {vr(t,2)}, {vr(t,2)}, {vr(ST,2)} op_sel:[0,1] op_sel_hi:[1,1]"] + rnd(t)
            out += unp(t + 2, DK + k) + [f"v_pk_mul_f32 {vr(t,2)}, {vr(t,2)}, {vr(t+2,2)}"] + rnd(t)
            out += unp(t + 2, B2 + k) + [f"v_pk_add_f32 {vr(xf,2)}, {vr(xf,2)}, {vr(t,2)}", f"v_pk_add_f32 {vr(xf,2)}, {vr(xf,2)}, {vr(t+2,2)}"]
        return out

    def phase2(self):
        A = self.A
        A("L_join:")
        A.vm = [("H", True)] * 12 + [("C3", True)] * 10 + [("H", True)] * 12 + [("C4", False)] * 10 + [("W2", False)] * 5 + [("W3", False)] * 5
        self.stamp(5)
        t0, t1 = vT, vT + 1
        A(f"s_lshl_b32 s{sT0}, s{sW}, 10\nv_lshl_add_u32 v{vHV}, v0, 4, s{sT0}")
        A(f"s_mul_i32 s{sT0}, s{sW}, 10240\ns_add_u32 s{sT0}, s{sT0}, {54*1024}\nv_lshl_add_u32 v{vHVX}, v0, 4, s{sT0}")
        A(f"v_lshrrev_b32 v{t0}, 1, v{vQ4}\nv_lshlrev_b32 v{t0}, 4, v{t0}\nv_and_b32 v{t1}, 1, v{vQ4}\nv_lshl_add_u32 v{t0}, v{t1}, 2, v{t0}")
        A(f"v_lshrrev_b32 v{t1}, 2, v{vN}\nv_add_u32 v{t0}, v{t0}, v{t1}\nv_mul_u32_u24 v{t0}, 160, v{t0}\nv_and_b32 v{t1}, 3, v{vN}")
        A(f"v_lshl_add_u32 v{t0}, v{t1}, 3, v{t0}\nv_add_u32 v{vTR}, s{sQ}, v{t0}")
        A(f"s_lshr_b32 s{sT0}, s{sR2}, 1\ns_lshl_b32 s{sT0}, s{sT0}, 11\ns_add_u32 s{sT0}, s{sT0}, {WS_FL}")
        A(f"s_add_u32 s6, s{P_WS}, s{sT0}\ns_addc_u32 s7, s{P_WS+1}, 0\ns_lshl_b32 s{sT1}, s{sW}, 7\ns_add_u32 s{sT2}, s{sT1}, 512")
        A(f"v_min_u32 v{vPL+1}, 6, v{vN}\nv_lshlrev_b32 v{vPL+1}, 7, v{vPL+1}\nv_add_u32 v{vPL+1}, {9*128}, v{vPL+1}")
        A(f"s_mov_b32 s{sT0}, 0\nL_pf:")
        A(f"s_load_dword s8, s[6:7], s{sT1} glc\ns_load_dword s9, s[6:7], s{sT2} glc\ns_load_dword s10, s[6:7], 1024 glc\ns_waitcnt lgkmcnt(0)")
        A(f"s_and_b32 s8, s8, s9\ns_and_b32 s8, s8, s10\ns_add_u32 s{sT0}, s{sT0}, 1\ns_cmp_ge_u32 s{sT0}, {SPIN}\ns_cbranch_scc1 L_pfd\ns_cmp_lg_u32 s8, 1\ns_cbranch_scc1 L_pf")
        A("L_pfd:\ns_barrier")
        self.stamp(6)
        self.flat(self.h_loads(0) + self.h_loads(1) + self.h_loads(2))
        for x in self.w2_reads(0):
            pass
        A.wait_vm("C3")
        for x in self.w2_reads(0) + self.c_readout(3, 1):
            A(x)
        row, col = vT + 2, vT + 3
        ld = [f"s_lshl_b32 s{sT0}, s{sR2}, 2\ns_add_u32 s{sT0}, s{sT0}, s{sW}\ns_lshr_b32 s{sT1}, s{sT0}, 3\ns_lshl_b32 s{sT1}, s{sT1}, 7\ns_and_b32 s{sT0}, s{sT0}, 7\ns_add_u32 s{sT0}, s{sT0}, s{sT1}",
              f"v_lshl_add_u32 v{row}, v{vN}, 3, s{sT0}\ns_mul_i32 s{sT1}, s{sCB}, 160\nv_lshl_add_u32 v{col}, v{vQ4}, 3, s{sT1}",
              f"v_mul_u32_u24 v{t0}, 1280, v{row}\nv_add_u32 v{t0}, v{t0}, v{col}\nv_lshlrev_b32 v{vOUT}, 1, v{t0}\nv_lshlrev_b32 v{row}, 3, v{row}\ns_mov_b32 s{sT1}, {WS_ST}"]
        for t in range(5):
            ld.append(("vm", f"buffer_load_dwordx2 {vr(BIN+2*t,2)}, v{t0}, {srd(SRD_X)}, 0 offen offset:{32*t}", "bs"))
            ld.append(("vm", f"global_load_dwordx2 {vr(BIN+10+2*t,2)}, v{col}, s[{P_DSK}:{P_DSK+1}] offset:{32*t}", "bs"))
            ld.append(("vm", f"global_load_dwordx2 {vr(BIN+20+2*t,2)}, v{col}, s[{P_B2}:{P_B2+1}] offset:{32*t}", "bs"))
        ld.append(("vm", f"buffer_load_dwordx2 {vr(BIN+30,2)}, v{row}, {srd(SRD_WS)}, s{sT1} offen sc1", "bs"))
        bc = self.base_code()
        nb = 6
        for j in range(24):
            tags = [f"H{j}"] + ([f"W{j+1}"] if j + 1 < 14 else [])
            if j == 11:
                tags.append("sf")
            if j == 17:
                tags.append("bs")
            A.wait_vm(tags, lgkm=0)
            if j == 0:
                A(f"s_cmp_eq_u32 s{sROLE}, 0\ns_cbranch_scc1 L_nofs\ns_barrier")
                self.flag_store(9, 1, "fl", "L_fsS")
                A("L_nofs:")
            if j == 11:
                A(f"s_mov_b32 s{sT0}, 0\nL_ps:\nv_cmp_ne_u32 vcc, 1, v{vPL}\ns_nop 4\ns_cbranch_vccz L_psd")
                A(f"global_load_dword v{vPL}, v{vPL+1}, s[6:7] sc1\ns_waitcnt vmcnt(0)")
                A(f"s_add_u32 s{sT0}, s{sT0}, 1\ns_cmp_lt_u32 s{sT0}, {SPIN}\ns_cbranch_scc1 L_ps\nL_psd:")
            streams = []
            rd = self.w2_reads(j + 1) if j + 1 < 14 else []
            if j == 0:
                rd = rd + self.c_readout(4, 2)
            streams.append((rd, 0.0, 0.55))
            vm = self.h_loads(j + 3) if j + 3 < 24 else []
            if j == 0:
                vm = vm + self.w2_dmas(4)
            elif j <= 9:
                vm = vm + self.w2_dmas(j + 4)
            if j == 9:
                vm = [("vm", f"global_load_dword v{vPL}, v{vPL+1}, s[6:7] sc1", "sf")] + vm
            if j in (12, 13):
                h = len(ld) // 2
                vm = vm + (ld[:h] if j == 12 else ld[h:])
            streams.append((vm, 0.05, 1.0))
            if 17 <= j < 17 + nb:
                k = j - 17
                streams.append((bc[len(bc) * k // nb: len(bc) * (k + 1) // nb], 0.0, 1.0))
            A.weave(self.mfmas2(j), streams)
        self.stamp(7)
        A(f"v_lshl_add_u32 v{vRW}, v0, 4, s{sQ}")
        for s in (1, 2, 3):
            A(f"s_sub_u32 s{sT0}, s{sW}, {s}\ns_and_b32 s{sT0}, s{sT0}, 3\ns_mul_i32 s{sT0}, s{sT0}, 40960\nv_lshl_add_u32 v{vRR+s}, v0, 4, s{sT0}")
        for s in (1, 2, 3):
            for t in range(5):
                A(f"ds_write_b128 v{vRW}, {vr(ACC2+(s*5+t)*4,4)} offset:{((s-1)*5+t)*1024}")
        for k in range(10):
            A(f"v_pk_add_f32 {vr(ACC2+2*k,2)}, {vr(ACC2+2*k,2)}, {vr(BASE+2*k,2)}")
        A("s_waitcnt lgkmcnt(0)\ns_barrier")
        for t in range(5):
            for s in (1, 2, 3):
                A(f"ds_read_b128 {vr(HR+(t*3+s-1)*4,4)}, v{vRR+s} offset:{((s-1)*5+t)*1024}")
        for t in range(5):
            A(f"s_waitcnt lgkmcnt({12-3*t})")
            r = HR + t * 12
            d = ACC2 + 4 * t
            for h in range(2):
                A(f"v_pk_add_f32 {vr(r+2*h,2)}, {vr(r+2*h,2)}, {vr(r+4+2*h,2)}")
                A(f"v_pk_add_f32 {vr(d+2*h,2)}, {vr(d+2*h,2)}, {vr(r+8+2*h,2)}")
            for h in range(2):
                A(f"v_pk_add_f32 {vr(d+2*h,2)}, {vr(d+2*h,2)}, {vr(r+2*h,2)}")
            A.vmem(f"buffer_store_dwordx4 {vr(d,4)}, v{vOUT}, {srd(SRD_O)}, 0 offen offset:{64*t} {self.o.get('outflag','')}", "out")
        if self.diag:
            A("s_waitcnt vmcnt(0)\ns_memrealtime s[4:5]\ns_waitcnt lgkmcnt(0)")
            for k in range(8):
                A(f"v_mov_b32 v{48+k}, s{STAMP0+2*k}")
            A(f"v_mov_b32 v56, s4\nv_mov_b32 v57, s{sROLE}\ns_getreg_b32 s5, hwreg(HW_REG_XCC_ID)\nv_mov_b32 v58, s5\nv_mov_b32 v59, s{sRB}")
            A(f"s_lshl_b32 s{sT0}, s2, 2\ns_add_u32 s{sT0}, s{sT0}, s{sW}\ns_lshl_b32 s{sT0}, s{sT0}, 6\ns_add_u32 s{sT0}, s{sT0}, {WS_DBG}\nv_mov_b32 v60, 0\ns_mov_b64 exec, 1\ns_nop 0")
            for k in range(3):
                A(f"buffer_store_dwordx4 v[{48+4*k}:{51+4*k}], v60, {srd(SRD_WS)}, s{sT0} offen offset:{16*k}")

    def build(self):
        A = self.A
        self.prologue()
        vm0 = list(A.vm)
        self.role_ffn()
        A.vm = list(vm0)
        self.role_ssm()
        self.phase2()
        A("L_end:\ns_endpgm")
        body, added = A.text()
        ref = open(f"cdna_kernels/{NAME}.s.ref").read()
        head = [l for l in ref.split("\n") if l.startswith(";") and "@launch" not in l]
        s = "\n".join(head) + "\n; @launch grid=(256,1,1) block=(256,1,1) lds=163840\n"
        s += f'.amdgcn_target "amdgcn-amd-amdhsa--gfx950"\n.text\n.globl {NAME}_kernel\n.p2align 8\n.type {NAME}_kernel,@function\n'
        s += f"{NAME}_kernel:\n" + body
        s += "L_code_end:\n.fill 1024, 4, 0xbf800000\n"
        s += f'''.section .rodata,"a"
.p2align 6
.amdhsa_kernel {NAME}_kernel
  .amdhsa_next_free_vgpr 512
  .amdhsa_next_free_sgpr 102
  .amdhsa_accum_offset 256
  .amdhsa_group_segment_fixed_size 0
  .amdhsa_kernarg_size 136
  .amdhsa_user_sgpr_count 2
  .amdhsa_user_sgpr_kernarg_segment_ptr 1
  .amdhsa_system_sgpr_workgroup_id_x 1
.end_amdhsa_kernel
'''
        return s, added


def build(**kw):
    import subprocess, re, tempfile, os
    s, added = Gen(**kw).build()
    with tempfile.TemporaryDirectory() as d:
        open(d + "/a.s", "w").write(s.replace("CODE_LINES", "9"))
        r = subprocess.run(["clang", "-x", "assembler", "-target", "amdgcn-amd-amdhsa", "-mcpu=gfx950", "-c", d + "/a.s", "-o", d + "/a.o"], capture_output=True, text=True)
        if r.returncode:
            print(r.stderr[:3000])
            raise SystemExit(1)
        sym = subprocess.run(["llvm-objdump", "-t", d + "/a.o"], capture_output=True, text=True).stdout
        size = int(re.search(r"([0-9a-f]{16}) .*L_code_end", sym).group(1), 16)
    lines = -(-size // 4096)
    return s.replace("CODE_LINES", str(lines)), size, added


if __name__ == "__main__":
    out = sys.argv[1] if len(sys.argv) > 1 else f"cdna_kernels/{NAME}.s"
    s, size, added = build(diag="diag" in sys.argv)
    open(out, "w").write(s)
    print("code bytes", size, "nops added", added)
```
